```python
import torch

def _softmax(x, axis=-1):
    return torch.softmax(x, dim=axis)
def _gelu(x):
    return torch.nn.functional.gelu(x, approximate="tanh")
def _silu(x):
    return torch.nn.functional.silu(x)
def _sigmoid(x):
    return torch.sigmoid(x)
def _layernorm(x, axis=-1, eps=1e-5):
    m = x.mean(dim=axis, keepdim=True)
    v = x.var(dim=axis, keepdim=True, unbiased=False)
    return (x - m) / torch.sqrt(v + eps)
def _scatter_add(tgt, idx, src, axis=0):
    return tgt.clone().index_add_(axis, idx, src)
def _segment_sum(src, seg, n):
    out = torch.zeros((n,) + src.shape[1:], dtype=src.dtype)
    return out.index_add_(0, seg, src)
def _pad(x, pw):
    flat = tuple(v for pair in reversed(pw) for v in pair)
    return torch.nn.functional.pad(x, flat)

kernel_name = 'parallel_sum__sliding_block_cached__geglu_ffn__decode'

def setup_inputs():

    _w = (lambda a: (lambda t: t.to(torch.bfloat16) if t.is_floating_point() else t)(torch.as_tensor(a)))
    def _A_setup():
        B, Sq, D = 1, 1, 576
        Hq, Hkv, Sk, Dh = 32, 16, 65536, 128
        assert Hq % Hkv == 0, (Hq, Hkv)
        return {
            "x": _w((lambda *s: torch.randn(*s, dtype=torch.bfloat16) * 0.05)(B, Sq, D)),
            "k_cache": _w((lambda *s: torch.randn(*s, dtype=torch.bfloat16) * 3.2)(B, Hkv, Sk, Dh)),
            "v_cache": _w((lambda *s: torch.randn(*s, dtype=torch.bfloat16) * 1.6)(B, Hkv, Sk, Dh)),
            "wq": _w((lambda *s: torch.randn(*s, dtype=torch.bfloat16) * 3.2)(D, Hq * Dh) * (D ** -0.5)),
            "wo": _w((lambda *s: torch.randn(*s, dtype=torch.bfloat16) * 1.6)(Hq * Dh, D) * ((Hq * Dh) ** -0.5)),
        }
    _A_in = _A_setup()

    def _B_setup():
        B, S, D, F = 1, 1, 576, 4608
        return {
            "x": _w((lambda *s: torch.randn(*s, dtype=torch.bfloat16) * 0.05)(B, S, D)),
            "w_gate": _w((lambda *s: torch.randn(*s, dtype=torch.bfloat16) * 0.05)(D, F)),
            "w_up": _w((lambda *s: torch.randn(*s, dtype=torch.bfloat16) * 0.05)(D, F)),
            "w_down": _w((lambda *s: torch.randn(*s, dtype=torch.bfloat16) * 0.05)(F, D)),
        }
    _B_in = _B_setup()

    return {
        "A_x": _A_in["x"],
        "A_k_cache": _A_in["k_cache"],
        "A_v_cache": _A_in["v_cache"],
        "A_wq": _A_in["wq"],
        "A_wo": _A_in["wo"],
        "B_x": _B_in["x"],
        "B_w_gate": _B_in["w_gate"],
        "B_w_up": _B_in["w_up"],
        "B_w_down": _B_in["w_down"],
    }

def reference(A_x, A_k_cache, A_v_cache, A_wq, A_wo, B_x, B_w_gate, B_w_up, B_w_down):
    def _A_ref(x, k_cache, v_cache, wq, wo):
        B, Sq, D = x.shape
        Hq, Dh = 32, 128
        Hkv, Sk = k_cache.shape[1], k_cache.shape[2]
        W = min(4096, max(256, Sk // 4))
        rep = Hq // Hkv
        q = (lambda x, *d: x.permute(*d))((x @ wq).reshape(B, Sq, Hq, Dh), 0, 2, 1, 3)
        k = (lambda x, n, axis: torch.repeat_interleave(x, n, dim=axis))(k_cache[:, :, Sk - W:, :], rep, axis=1)
        v = (lambda x, n, axis: torch.repeat_interleave(x, n, dim=axis))(v_cache[:, :, Sk - W:, :], rep, axis=1)
        scores = torch.einsum("bhqd,bhkd->bhqk", q, k) * (Dh ** -0.5)
        p = _softmax(scores, axis=-1)
        o = torch.einsum("bhqk,bhkd->bhqd", p, v)
        return (lambda x, *d: x.permute(*d))(o, 0, 2, 1, 3).reshape(B, Sq, Hq * Dh) @ wo

    def _B_ref(x, w_gate, w_up, w_down):
        return (_gelu(x @ w_gate) * (x @ w_up)) @ w_down

    x = A_x
    xn = _layernorm(x, axis=-1)
    return x + _A_ref(xn, A_k_cache, A_v_cache, A_wq, A_wo) + _B_ref(xn, B_w_gate, B_w_up, B_w_down)
```

```python
KNAME = 'parallel_sum__sliding_block_cached__geglu_ffn__decode_kernel'
HEADER_COMMENT = open('parallel_sum__sliding_block_cached__geglu_ffn__decode.s.ref').read().split('; Override launch')[0]
class Asm:
    def __init__(self):
        self.l = []
    def __call__(self, s):
        for line in s.strip('\n').split('\n'):
            self.l.append(line)
    def text(self): return '\n'.join(self.l) + '\n'
def wrap(body, grid, block, lds, vgpr, sgpr=102, accum=None, name=KNAME):
    if accum is None: accum = min(256, (vgpr + 3) // 4 * 4)
    return f"""{HEADER_COMMENT}; @launch grid=({grid},1,1) block=({block},1,1) lds={lds}
.amdgcn_target "amdgcn-amd-amdhsa--gfx950"
.text
.globl {name}
.p2align 8
.type {name},@function
{name}:
{body}
.section .rodata,"a"
.p2align 6
.amdhsa_kernel {name}
  .amdhsa_next_free_vgpr {vgpr}
  .amdhsa_next_free_sgpr {sgpr}
  .amdhsa_accum_offset {accum}
  .amdhsa_group_segment_fixed_size 0
  .amdhsa_kernarg_size 96
  .amdhsa_user_sgpr_count 2
  .amdhsa_user_sgpr_kernarg_segment_ptr 1
  .amdhsa_system_sgpr_workgroup_id_x 1
.end_amdhsa_kernel
"""
```

```python
import re
def regs_of(tok):
    tok = tok.strip()
    neg = tok.lstrip('-').replace('abs(', '').replace(')', '').replace('|', '')
    m = re.fullmatch(r'([vsa])\[(\d+):(\d+)\]', neg)
    if m: return {(m.group(1), i) for i in range(int(m.group(2)), int(m.group(3)) + 1)}
    m = re.fullmatch(r'([vsa])(\d+)', neg)
    if m: return {(m.group(1), int(m.group(2)))}
    if neg == 'vcc': return {('s', 'vcc')}
    if neg == 'exec': return {('s', 'exec')}
    if neg == 'm0': return {('s', 'm0')}
    return set()
TRANS = ('v_exp_f32', 'v_log_f32', 'v_rcp_f32', 'v_rsq_f32', 'v_sqrt_f32', 'v_sin_f32', 'v_cos_f32')
class I:
    def __init__(self, line):
        self.line = line
        code = line.split(';')[0].strip()
        self.label = code.endswith(':')
        self.empty = (not code) or code.startswith('.')
        self.op = ''; self.w = set(); self.r = set(); self.c = set(); self.states = 0
        if self.label or self.empty: return
        parts = code.split(None, 1)
        self.op = op = parts[0]
        rest = parts[1] if len(parts) > 1 else ''
        ops = [o.strip() for o in re.split(r',(?![^\[]*\])', rest)]
        toks = []
        for o in ops:
            toks.append(o.split()[0] if o else '')
        self.states = 1
        if op == 's_nop': self.states = int(toks[0]) + 1
        self.valu = op.startswith('v_')
        self.mfma = op.startswith('v_mfma')
        self.dpp = ('_dpp' in op) or (' row_' in code) or ('quad_perm' in code)
        self.sdwa = '_sdwa' in op
        self.perm = op.startswith('v_permlane')
        self.dot = op.startswith('v_dot')
        self.trans = any(op.startswith(t) for t in TRANS)
        self.vmem = op.startswith(('buffer_', 'global_'))
        self.ds = op.startswith('ds_')
        self.lane = op.startswith(('v_readlane', 'v_readfirstlane'))
        self.wlane = op.startswith('v_writelane')
        R = [regs_of(t) for t in toks]
        if self.valu:
            if self.perm:
                self.w = R[0] | R[1]; self.r = R[0] | R[1]
            else:
                self.w = set(R[0])
                k = 1
                if op.startswith(('v_add_co', 'v_sub_co', 'v_addc_co', 'v_subb_co', 'v_div_scale', 'v_mad_u64')):
                    self.w |= R[1]; k = 2
                for x in R[k:]: self.r |= x
                if op.startswith(('v_fmac', 'v_dot2c', 'v_writelane', 'v_pk_fmac')) or self.dpp or self.sdwa: self.r |= R[0]
                if self.mfma: self.c = R[3]
                if op.startswith('v_cndmask') and len(toks) == 3: self.r |= {('s', 'vcc')}
                if op.startswith('v_cmpx'): self.w |= {('s', 'exec')}
        elif self.vmem:
            store = 'store' in op or 'atomic' in op
            if store:
                for x in R: self.r |= x
                self.wide = ('x4' in op or 'x3' in op)
                self.data = R[0] if op.startswith('buffer') else R[1]
            else:
                if ' lds' in code:
                    for x in R: self.r |= x
                else:
                    self.w = set(R[0])
                    for x in R[1:]: self.r |= x
        elif self.ds:
            if 'write' in op or 'add' in op:
                for x in R: self.r |= x
            else:
                self.w = set(R[0])
                for x in R[1:]: self.r |= x
        else:
            if R: self.w = set(R[0])
            for x in R[1:]: self.r |= x
def passes(op):
    if '16x16x32' in op or '16x16x16' in op: return 4
    if '32x32x16' in op or '32x32x8' in op: return 8
    if '16x16x4_f32' in op: return 8
    raise ValueError(op)
def need(p, c):
    n = 0
    V = lambda s: {x for x in s if x[0] in 'va'}
    S = lambda s: {x for x in s if x[0] == 's'}
    if not p.op or not c.op: return 0
    if p.op.startswith('v_'):
        if p.mfma:
            ps = passes(p.op)
            big = {4: 8, 8: 12}[ps]
            if c.op.startswith('v_'):
                if c.mfma:
                    ab = c.r - c.c if False else None
                    toks_ab = c.ab
                    if p.w & toks_ab: n = max(n, big)
                    if p.w & c.c and not (p.w == c.c and passes(c.op) == ps): n = max(n, {4: 6, 8: 10}[ps])
                    if (p.w & c.w) and not (p.w == c.c): n = max(n, big)
                else:
                    if p.w & (c.r | c.w): n = max(n, big)
                    if p.c & c.w: n = max(n, {4: 3, 8: 7}[ps])
            elif c.vmem or c.ds:
                if p.w & (c.r | c.w): n = max(n, big)
        else:
            if c.op.startswith('v_'):
                if c.mfma and V(p.w) & c.r: n = max(n, 2)
                if c.mfma and ('s', 'exec') in p.w: n = max(n, 4)
                if c.dpp and V(p.w) & c.r: n = max(n, 2)
                if c.dpp and ('s', 'exec') in p.w: n = max(n, 5)
                if c.perm and V(p.w) & c.r: n = max(n, 2)
                if c.lane and V(p.w) & c.r: n = max(n, 1)
                if p.trans and not c.trans and p.w & c.r: n = max(n, 1)
                if p.trans and c.trans and p.w & c.r: n = max(n, 1)
                if p.sdwa and V(p.w) & (c.r | c.w): n = max(n, 1)
                if p.dot and p.w & (c.r | c.w):
                    if not (c.op == p.op and (p.w & c.srcc) and not (p.w & c.srcab)): n = max(n, 3)
                if S(p.w) & c.r:
                    n = max(n, 4 if (c.lane or c.wlane) else 2)
            elif c.vmem:
                if S(p.w) & c.r: n = max(n, 5)
                if p.dot and p.w & c.r: n = max(n, 3)
                if p.trans and p.w & c.r: n = max(n, 1)
            elif c.ds:
                if p.dot and p.w & c.r: n = max(n, 3)
                if p.trans and p.w & c.r: n = max(n, 1)
            else:
                if S(p.w) & c.r and p.lane: n = max(n, 1)
    elif p.vmem and getattr(p, 'wide', False):
        if p.data & c.w: n = max(n, 2)
    elif p.op.startswith('s_') and ('s', 'm0') in p.w:
        if c.vmem or c.wlane or c.lane: n = max(n, 1)
    elif p.op.startswith('s_') and ('s', 'exec') in p.w:
        pass
    return n
def pad(text):
    out = []
    hist = []
    added = 0
    for line in text.split('\n'):
        c = I(line)
        if c.label or c.empty:
            out.append(line); continue
        code = line.split(';')[0].strip()
        rest = code.split(None, 1)[1] if len(code.split(None, 1)) > 1 else ''
        toks = [o.strip().split()[0] if o.strip() else '' for o in re.split(r',(?![^\[]*\])', rest)]
        if c.mfma: c.ab = regs_of(toks[1]) | regs_of(toks[2])
        if c.op.startswith('v_dot'):
            c.srcab = regs_of(toks[1]) | regs_of(toks[2])
            c.srcc = regs_of(toks[3]) if len(toks) > 3 else regs_of(toks[0])
        else:
            c.srcab = set(); c.srcc = set()
        dist = 0; req = 0
        for p in reversed(hist[-24:]):
            k = need(p, c) - dist
            req = max(req, k)
            dist += p.states
            if dist > 20: break
        if req > 0:
            out.append(f'  s_nop {req-1}')
            hist.append(I(f's_nop {req-1}'))
            added += 1
        out.append(line); hist.append(c)
    return '\n'.join(out), added
```

```python
import sys
from asmgen import *
import hazard

KW = (65536 - 4096) * 256
WS_H1 = 0x1000
WS_H2 = 0x20000
WS_HH = 0x80000
WS_H3 = 0x120000
WS_STAMP = 0x200000
WS_SIZE = 0x400000
L_QP, L_QS, L_ML, L_AV, L_RED, L_OP = 0, 2560, 3072, 3328, 3456, 4096
LDS = 12288
BIG = 0x40000000
C_SCALE = 0x3DB504F3
C_LOG2E = 0x3FB8AA3B
SPIN = 1 << 17

class VM:
    def __init__(self, a): self.a = a; self.q = []
    def issue(self, name, text): self.a(text); self.q.append(name)
    def wait(self, name):
        if name not in self.q: return
        n = len(self.q) - 1 - self.q.index(name)
        self.a(f"  s_waitcnt vmcnt({n})")
        self.q = self.q[len(self.q) - n:] if n else []
    def pace(self, W):
        if len(self.q) >= W: self.wait(self.q[len(self.q) - W])

def gen(name, W=4, b2pos=4, stamps=False, pollpos=1, st='sc1', ld='sc1', prefetch=True, outflag=''):
    a = Asm(); vm = VM(a)
    ns = [0]
    def stamp(i):
        if stamps: a(f"  s_memrealtime s[{60+2*i}:{61+2*i}]")
    def reduce64(v):
        for m in ('row_ror:8', 'row_ror:4', 'row_ror:2', 'row_ror:1'):
            a(f"  v_add_f32_dpp {v}, {v}, {v} {m} row_mask:0xf bank_mask:0xf")
        a(f"  v_add_f32_dpp {v}, {v}, {v} row_bcast:15 row_mask:0xa bank_mask:0xf")
        a(f"  v_add_f32_dpp {v}, {v}, {v} row_bcast:31 row_mask:0xc bank_mask:0xf")
    def afrag(dst, src):
        for r in range(4): a(f"  v_and_b32 v{dst+r}, v{src}, v{8+r}")
    def normalize(regs):
        for v in regs: a(f"  v_lshlrev_b32 v{v}, 16, v{v}")
        for v in regs: a(f"  v_sub_f32 v{v}, v{v}, v31")
        for v in regs: a(f"  v_cvt_pk_bf16_f32 v{v}, v{v}, v{v}")
        for v in regs: a(f"  v_and_b32 v{v}, 0xffff0000, v{v}")
        for v in regs: a(f"  v_mul_f32 v{v}, v{v}, v32")
        for v in regs: a(f"  v_cvt_pk_bf16_f32 v{v}, v{v}, v{v}")
    def lane_combine(tmp=33):
        for r in range(4): a(f"  v_permlane32_swap_b32 v{12+r}, v{tmp+r}")
        for r in range(4): a(f"  v_add_f32_dpp v{12+r}, v{tmp+r}, v{12+r} row_ror:8 row_mask:0xf bank_mask:0xf")
    def tag(dst, src):
        for r in range(4): a(f"  v_and_or_b32 v{dst+r}, v{src+r}, v7, s{48+r}")
    def untag(base, chk, first=True):
        for r in range(4): a(f"  v_xor_b32 v{base+r}, s{48+r}, v{base+r}")
        if first:
            a(f"  v_or3_b32 v{chk}, v{base}, v{base+1}, v{base+2}")
            a(f"  v_or_b32 v{chk}, v{chk}, v{base+3}")
        else:
            a(f"  v_or3_b32 v{chk}, v{chk}, v{base}, v{base+1}")
            a(f"  v_or3_b32 v{chk}, v{chk}, v{base+2}, v{base+3}")
    def poll_end(chk, label):
        a(f"""
  v_and_b32 v{chk}, 0xff, v{chk}
  v_cmp_ne_u32 vcc, 0, v{chk}
  s_sub_u32 s59, s59, 1
  s_cbranch_scc1 L_end
  s_cbranch_vccnz {label}
""")
    def rows4to1(x, out):
        a(f"""
  v_permlane32_swap_b32 v{x}, v{x+1}
  v_permlane32_swap_b32 v{x+2}, v{x+3}
  v_add_f32 v{x}, v{x}, v{x+1}
  v_add_f32 v{x+2}, v{x+2}, v{x+3}
  v_permlane16_swap_b32 v{x}, v{x+2}
  v_add_f32 v{out}, v{x}, v{x+2}
""")
    stamp(0)
    a(f"""
  s_cmp_ge_u32 s2, 256
  s_cbranch_scc1 L_end
  s_and_b32 s36, s2, 15                 ; g
  s_lshr_b32 s37, s2, 4                 ; s
  s_lshr_b32 s39, s2, 7                 ; W role (s >= 8)
  s_and_b32 s54, s2, 8
  s_add_u32 s54, s54, 48
  s_lshl_b32 s55, s39, 5
  s_sub_u32 s55, 64, s55
  s_load_dwordx2 s[4:5], s[0:1], 0
  s_load_dwordx2 s[8:9], s[0:1], 24
  s_load_dwordx2 s[12:13], s[0:1], 8
  s_load_dwordx2 s[28:29], s[0:1], 88
  s_load_dwordx2 s[16:17], s[0:1], 16
  s_load_dwordx2 s[20:21], s[0:1], s54
  s_load_dwordx2 s[24:25], s[0:1], s55
""")
    if prefetch:
        a(f"""
  s_getpc_b64 s[56:57]
L_pc:
  v_lshlrev_b32 v1, 4, v0
  v_min_u32 v1, L_end-L_pc, v1
""")
        vm.issue('pf', "  global_load_dword v47, v1, s[56:57]")
    a(f"""
  v_lshrrev_b32 v1, 6, v0
  v_and_b32 v0, 63, v0
  v_readfirstlane_b32 s3, v1            ; wave
  s_and_b32 s38, s2, 7                  ; k
  s_mov_b32 s6, 1152
  s_mov_b32 s7, 0x20000
  s_mov_b32 s10, {576*4096*2}
  s_mov_b32 s11, 0x20000
  s_mov_b32 s14, 0x10000000
  s_mov_b32 s15, 0x20000
  v_lshlrev_b32 v1, 4, v0               ; lane*16
  v_lshrrev_b32 v33, 3, v0              ; l>>3
  v_and_b32 v34, 7, v0
  v_lshlrev_b32 v34, 4, v34             ; (l&7)*16
  v_lshl_add_u32 v2, v33, 13, v34
  v_lshlrev_b32 v35, 2, v0
  v_lshlrev_b32 v36, 1, v33             ; (l>>3)*2
  s_and_b32 s54, s37, 3                 ; rb
  s_mul_i32 s54, s54, 144
  s_lshl_b32 s55, s3, 4
  s_add_u32 s54, s54, s55
  s_lshl_b32 s58, s54, 1
  s_lshl_b32 s40, s54, 13
  s_lshl_b32 s55, s36, 9
  s_add_u32 s40, s40, s55
  s_lshr_b32 s55, s37, 2                ; cb
  s_lshl_b32 s55, s55, 7
  s_add_u32 s40, s40, s55
  s_add_u32 s41, s40, {8*8192}
  s_lshl_b32 s43, s36, 24
  s_lshl_b32 s55, s37, 16
  s_add_u32 s43, s43, s55
  s_lshl_b32 s55, s3, 10
  s_add_u32 s43, s43, s55
  s_add_u32 s43, s43, {KW}
  s_mov_b32 s44, s43
  s_waitcnt lgkmcnt(0)
""")
    stamp(1)
    vm.issue('x4', "  buffer_load_dwordx4 v[88:91], v1, s[4:7], 0 offen")
    vm.issue('x1', "  buffer_load_dword v92, v35, s[4:7], 0 offen offset:1024")
    vm.issue('xs0', "  buffer_load_ushort v24, v36, s[4:7], s58 offen")
    vm.issue('xs1', "  buffer_load_ushort v25, v36, s[4:7], s58 offen offset:16")
    vm.issue('Q0', "  buffer_load_dwordx4 v[48:51], v2, s[8:11], s40 offen nt")
    vm.issue('Q1', "  buffer_load_dwordx4 v[52:55], v2, s[8:11], s41 offen nt")
    a(f"""
  s_load_dword s47, s[28:29], 0
  s_load_dwordx2 s[32:33], s[0:1], 72
  s_cmp_eq_u32 s3, 8
  s_cselect_b32 s43, {BIG}, s43
""")
    seq = [f'K{i}' for i in range(8)] + [f'V{i}' for i in range(8)] + [f'G{i}' for i in range(5)] + [f'F{i}' for i in range(5)]
    pos = [0]
    def issue_next():
        if pos[0] >= len(seq): return
        n = seq[pos[0]]; pos[0] += 1
        issue(n)
    def issue(n):
        t = int(n[1])
        if n[0] == 'K':
            vm.issue(n, f"  buffer_load_dwordx4 v[{56+4*t}:{59+4*t}], v1, s[12:15], s43 offen nt"); a("  s_add_u32 s43, s43, 8192")
        elif n[0] == 'V':
            vm.issue(n, f"  buffer_load_dwordx4 v[{88+4*t}:{91+4*t}], v1, s[16:19], s44 offen nt"); a("  s_add_u32 s44, s44, 8192")
        elif n[0] == 'G':
            vm.issue(n, f"  buffer_load_dwordx4 v[{120+4*t}:{123+4*t}], {'v4' if t == 4 else 'v3'}, s[20:23], s45 offen nt"); a(f"  s_add_u32 s45, s45, {8*9216}")
        else:
            vm.issue(n, f"  buffer_load_dwordx4 v[{56+4*t}:{59+4*t}], {'v6' if t == 4 else 'v5'}, s[24:27], s46 offen nt"); a(f"  s_add_u32 s46, s46, {8*1152}")
    for _ in range(W - 2): issue_next()
    a(f"""
  s_mov_b32 s18, 0x10000000
  s_mov_b32 s19, 0x20000
  s_mov_b32 s22, {576*4608*2}
  s_mov_b32 s23, 0x20000
  s_mov_b32 s27, 0x20000
  s_mov_b32 s30, {WS_SIZE}
  s_mov_b32 s31, 0x20000
  s_mov_b32 s34, 1152
  s_mov_b32 s35, 0x20000
  s_mov_b32 s59, {SPIN}
  s_cmp_eq_u32 s39, 1
  s_cselect_b32 s26, {576*4096*2}, {0}
  s_cselect_b32 s54, 0, {576*4608*2}
  s_or_b32 s26, s26, s54
  v_mul_u32_u24 v3, 9216, v33
  v_add_u32 v3, v3, v34
  v_mul_u32_u24 v5, 1152, v33
  v_add_u32 v5, v5, v34
  v_cmp_gt_u32 vcc, 32, v0
  v_mov_b32 v7, {BIG}
  v_cndmask_b32 v4, v7, v3, vcc
  v_cndmask_b32 v6, v7, v5, vcc
  v_mov_b32 v7, 0xffffff00
  v_and_b32 v35, 1, v0
  v_lshlrev_b32 v35, 4, v35
  v_lshlrev_b32 v35, v35, 1
  v_mul_u32_u24 v35, 0xffff, v35
  v_bfe_u32 v37, v0, 1, 2
  v_cmp_eq_u32 s[54:55], 0, v37
  v_cmp_eq_u32 s[56:57], 1, v37
  v_cndmask_b32 v8, 0, v35, s[54:55]
  v_cndmask_b32 v9, 0, v35, s[56:57]
  v_cmp_eq_u32 s[54:55], 2, v37
  v_cmp_eq_u32 s[56:57], 3, v37
  v_cndmask_b32 v10, 0, v35, s[54:55]
  v_cndmask_b32 v11, 0, v35, s[56:57]
  s_mul_i32 s45, s37, {36*9216}
  s_mul_i32 s54, s38, 1152
  s_add_u32 s45, s45, s54
  s_lshl_b32 s55, s3, 7
  s_add_u32 s45, s45, s55
  s_and_b32 s42, s37, 7                 ; j (W) or s&7 (D)
  s_lshl_b32 s54, s42, 1
  s_lshr_b32 s52, s36, 3
  s_add_u32 s52, s52, s54               ; dj
  s_mul_i32 s54, s52, 36
  s_mul_i32 s56, s38, 576
  s_add_u32 s54, s54, s56
  s_lshl_b32 s56, s36, 8
  s_lshl_b32 s57, s42, 5
  s_add_u32 s56, s56, s57
  s_cmp_eq_u32 s39, 1
  s_cselect_b32 s54, s56, s54
  s_mul_i32 s46, s54, 1152
  s_add_u32 s46, s46, s55
  s_mul_i32 s58, s37, 72
""")
    vm.wait('x1')
    for i in range(5):
        a(f"  v_lshlrev_b32 v{94+2*i}, 16, v{88+i}")
        a(f"  v_and_b32 v{95+2*i}, 0xffff0000, v{88+i}")
    a("""
  v_add_f32 v33, v94, v95
  v_add_f32 v34, v96, v97
  v_add_f32 v35, v98, v99
  v_add_f32 v37, v100, v101
  v_add_f32 v33, v33, v102
  v_add_f32 v34, v34, v103
  v_add_f32 v35, v35, v37
  v_add_f32 v33, v33, v34
  v_add_f32 v33, v33, v35
""")
    reduce64('v33')
    a(f"""
  v_readlane_b32 s54, v33, 63
  v_mov_b32 v34, 0x3AE38E39             ; 1/576
  v_mul_f32 v31, s54, v34               ; mean
""")
    for i in range(10): a(f"  v_sub_f32 v{94+i}, v{94+i}, v31")
    a("""
  v_cndmask_b32 v102, 0, v102, vcc
  v_cndmask_b32 v103, 0, v103, vcc
  v_mul_f32 v33, v94, v94
  v_mul_f32 v35, v95, v95
""")
    for i in range(2, 10): a(f"  v_fmac_f32 v{33 if i % 2 == 0 else 35}, v{94+i}, v{94+i}")
    a("  v_add_f32 v33, v33, v35")
    reduce64('v33')
    a(f"""
  v_readlane_b32 s54, v33, 63
  v_cvt_pk_bf16_f32 v31, v31, v31
  v_and_b32 v31, 0xffff0000, v31        ; bf16(mean)
  v_mul_f32 v32, s54, v34               ; var
  v_cvt_pk_bf16_f32 v32, v32, v32
  v_and_b32 v32, 0xffff0000, v32
  v_add_f32 v32, 0x3727C5AC, v32        ; + 1e-5
  v_cvt_pk_bf16_f32 v32, v32, v32
  v_and_b32 v32, 0xffff0000, v32
  v_sqrt_f32 v32, v32
  v_cvt_pk_bf16_f32 v32, v32, v32
  v_and_b32 v32, 0xffff0000, v32
  v_rcp_f32 v32, v32
""")
    vm.wait('xs1')
    normalize([24, 25])
    afrag(16, 24); afrag(20, 25)
    stamp(2)
    vm.wait('Q1')
    issue_next(); issue_next()
    a("""
  v_mfma_f32_16x16x32_bf16 v[12:15], v[16:19], v[48:51], 0
  v_mfma_f32_16x16x32_bf16 v[12:15], v[20:23], v[52:55], v[12:15]
""")
    for t in range(5):
        vm.issue(f'xg{t}', f"  buffer_load_ushort v{26+t}, v36, s[4:7], s58 offen offset:{16*t}")
    a(f"""
  v_and_b32 v37, 7, v0
  v_lshlrev_b32 v37, 5, v37
  v_and_b32 v38, 16, v0
  v_add_u32 v37, v37, v38
  v_and_b32 v38, 0x28, v0
  v_cmp_eq_u32 vcc, 0, v38
  v_mov_b32 v38, {BIG}
  v_cndmask_b32 v2, v38, v37, vcc
  s_lshl_b32 s54, s3, 8
  v_add_u32 v37, s54, v37
  v_mov_b32 v38, {L_QP + 2304}
  v_cndmask_b32 v37, v38, v37, vcc
""")
    lane_combine()
    a(f"""
  ds_write_b128 v37, v[12:15]
  s_waitcnt lgkmcnt(0)
  s_add_u32 s47, s47, 0x01010101
  s_and_b32 s48, s47, 0xff
  s_bfe_u32 s49, s47, 0x80008
  s_bfe_u32 s50, s47, 0x80010
  s_lshr_b32 s51, s47, 24
  s_barrier                             ; B1
  s_cmp_eq_u32 s3, 8
  s_cbranch_scc1 L_w8
""")
    stamp(3)
    q_at_b1 = list(vm.q)
    def pace_issue():
        big = [n for n in vm.q if n[0] in 'KVGFQ']
        if len(big) >= W: vm.wait(big[len(big) - W])
        issue_next()
    while pos[0] < 8 + b2pos: pace_issue()
    a(f"""
  v_and_b32 v33, 15, v0
  v_lshlrev_b32 v33, 4, v33
  s_barrier                             ; B2
  ds_read_b128 v[48:51], v33 offset:{L_QS}
  ds_read_b128 v[52:55], v33 offset:{L_QS+256}
""")
    stamp(4)
    vm.wait('K7')
    a("  s_waitcnt lgkmcnt(0)")
    def qk(i0):
        T = [33, 34, 35, 36]
        for r in range(4):
            for u in range(2):
                for h in range(2):
                    d = T[2*u+h]
                    a(f"  v_dot2_f32_bf16 v{d}, v{56+4*(i0+u)+r}, v{48+4*h+r}, {'0' if r == 0 else 'v%d' % d}")
        for u in range(2):
            a(f"  v_add_f32_dpp v{40+i0+u}, v{T[2*u]}, v{T[2*u]} row_ror:8 row_mask:0xf bank_mask:0x3")
        for u in range(2):
            a(f"  v_add_f32_dpp v{40+i0+u}, v{T[2*u+1]}, v{T[2*u+1]} row_ror:8 row_mask:0xf bank_mask:0xc")
    qk(0); qk(2); pace_issue(); qk(4); qk(6)
    for m in ('row_half_mirror', 'quad_perm:[1,0,3,2]', 'quad_perm:[2,3,0,1]'):
        for i in range(8): a(f"  v_add_f32_dpp v{40+i}, v{40+i}, v{40+i} {m} row_mask:0xf bank_mask:0xf")
    pace_issue()
    for i in range(4): a(f"  v_cvt_pk_bf16_f32 v{33+i}, v{40+2*i}, v{41+2*i}")
    for i in range(4):
        a(f"  v_lshlrev_b32 v{40+2*i}, 16, v{33+i}")
        a(f"  v_and_b32 v{41+2*i}, 0xffff0000, v{33+i}")
    a(f"  s_mov_b32 s54, {C_SCALE}")
    for i in range(8): a(f"  v_mul_f32 v{40+i}, s54, v{40+i}")
    for i in range(4): a(f"  v_cvt_pk_bf16_f32 v{33+i}, v{40+2*i}, v{41+2*i}")
    for i in range(4):
        a(f"  v_lshlrev_b32 v{40+2*i}, 16, v{33+i}")
        a(f"  v_and_b32 v{41+2*i}, 0xffff0000, v{33+i}")
    a(f"""
  v_max3_f32 v38, v40, v41, v42
  v_max3_f32 v33, v43, v44, v45
  v_max3_f32 v38, v38, v46, v47
  v_max_f32 v38, v38, v33
  v_mov_b32 v33, v38
  v_permlane32_swap_b32 v38, v33
  v_max_f32 v38, v38, v33
  v_mov_b32 v33, v38
  v_permlane16_swap_b32 v38, v33
  v_max_f32 v38, v38, v33
  s_mov_b32 s53, {C_LOG2E}
  v_mul_f32 v33, s53, v38
""")
    for i in range(8): a(f"  v_fma_f32 v{40+i}, v{40+i}, s53, -v33")
    for i in range(8): a(f"  v_exp_f32 v{40+i}, v{40+i}")
    pace_issue()
    a("""
  v_add_f32 v39, v40, v41
  v_add_f32 v33, v42, v43
  v_add_f32 v34, v44, v45
  v_add_f32 v35, v46, v47
  v_add_f32 v39, v39, v33
  v_add_f32 v34, v34, v35
  v_add_f32 v39, v39, v34
""")
    for i in range(8): a(f"  v_cvt_pk_bf16_f32 v{40+i}, v{40+i}, v{40+i}")
    a(f"""
  v_mov_b32 v33, v39
  v_permlane32_swap_b32 v39, v33
  v_add_f32 v39, v39, v33
  v_mov_b32 v33, v39
  v_permlane16_swap_b32 v39, v33
  v_add_f32 v39, v39, v33
  v_and_b32 v33, 8, v0
  v_lshlrev_b32 v33, 3, v33             ; head*64
  s_lshl_b32 s54, s3, 3
  v_add_u32 v33, s54, v33
  ds_write_b64 v33, v[38:39] offset:{L_ML}
""")
    stamp(5)
    for i in range(8):
        A = 16 + 4 * (i & 1)
        afrag(A, 40 + i)
        vm.wait(f'V{i}')
        while len([n for n in vm.q if n[0] in 'KVGF']) < W and pos[0] < 16 + min(W, 5): issue_next()
        a(f"  v_mfma_f32_16x16x32_bf16 v[12:15], v[{A}:{A+3}], v[{88+4*i}:{91+4*i}], {'0' if i == 0 else 'v[12:15]'}")
    assert pos[0] == 16 + min(W, 5), pos
    a(f"""
  v_and_b32 v33, 15, v0
  v_lshlrev_b32 v33, 5, v33
  v_and_b32 v34, 16, v0
  v_add_u32 v33, v33, v34
  v_and_b32 v34, 32, v0
  v_lshl_add_u32 v33, v34, 4, v33       ; granule*16
  s_lshl_b32 s54, s3, 10
  v_add_u32 v33, s54, v33
  ds_write_b128 v33, v[12:15] offset:{L_OP}
  s_waitcnt lgkmcnt(0)
  s_barrier                             ; B3
""")
    stamp(6)
    q_shared = list(vm.q); pos_shared = pos[0]
    a("L_shared:")
    normalize([26, 27, 28, 29, 30])
    for t in range(5):
        A = 16 + 4 * (t & 1)
        afrag(A, 26 + t)
        vm.wait(f'G{t}')
        while len([n for n in vm.q if n[0] in 'KVGF']) < W and pos[0] < len(seq) - 1: issue_next()
        a(f"  v_mfma_f32_16x16x32_bf16 v[12:15], v[{A}:{A+3}], v[{120+4*t}:{123+4*t}], {'0' if t == 0 else 'v[12:15]'}")
    a(f"""
  s_lshl_b32 s54, s38, 1
  s_lshr_b32 s55, s36, 3
  s_add_u32 s54, s54, s55
  s_lshl_b32 s54, s54, 4
  s_add_u32 s54, s54, s37
  s_mul_i32 s54, s54, 2304
  s_lshl_b32 s55, s3, 8
  s_add_u32 s54, s54, s55
  s_add_u32 s54, s54, {WS_HH}
""")
    lane_combine()
    tag(12, 12)
    vm.issue('sHH', f"  buffer_store_dwordx4 v[12:15], v2, s[28:31], s54 offen {st}")
    stamp(7)
    while pos[0] < len(seq) - 1: pace_issue()
    a("""
  s_cmp_eq_u32 s39, 1
  s_cbranch_scc1 L_wrole
""")
    qsave = list(vm.q)
    pace_issue()
    a(f"""
  s_cmp_ge_u32 s3, 5
  s_cbranch_scc1 L_b4
  s_lshl_b32 s54, s3, 1
  v_and_b32 v33, 1, v0
  v_add_u32 v33, s54, v33
  v_min_u32 v34, 8, v33
  v_lshlrev_b32 v34, 4, v34
  v_lshrrev_b32 v35, 2, v0
  v_and_b32 v36, 2, v0
  v_lshl_add_u32 v35, v36, 3, v35
  v_mul_u32_u24 v35, 2304, v35
  v_add_u32 v34, v34, v35
  s_mul_i32 s54, s38, {32*2304}
  s_mul_i32 s55, s52, 144
  s_add_u32 s54, s54, s55
  s_add_u32 s54, s54, {WS_HH}
  v_lshlrev_b32 v33, 3, v33
  v_bfe_u32 v35, v0, 4, 1
  v_lshl_add_u32 v33, v35, 2, v33
  v_lshrrev_b32 v35, 5, v0
  v_lshl_add_u32 v33, v35, 1, v33
""")
    if pollpos < 5: vm.wait(f'F{4-pollpos}')
    a(f"""
L_pollhh:
  buffer_load_dwordx4 v[40:43], v34, s[28:31], s54 offen {ld}
  s_waitcnt vmcnt(0)
""")
    untag(40, 44)
    poll_end(44, 'L_pollhh')
    rows4to1(40, 40)
    a(f"""
  v_add_f32_dpp v40, v40, v40 row_ror:4 row_mask:0xf bank_mask:0xf
  v_add_f32_dpp v40, v40, v40 row_ror:8 row_mask:0xf bank_mask:0xf
  v_cvt_pk_bf16_f32 v40, v40, v40
  v_and_b32 v40, 0xffff0000, v40
  v_mov_b32_dpp v41, v40 quad_perm:[2,3,2,3] row_mask:0xf bank_mask:0xf     ; u
  v_mov_b32_dpp v40, v40 quad_perm:[0,1,0,1] row_mask:0xf bank_mask:0xf     ; g
  v_mul_f32 v42, v40, v40
  v_mov_b32 v43, 0xC0135761             ; -2*sqrt(2/pi)*log2(e)
  v_fmac_f32 v43, 0xBDD2D3E8, v42       ; ... * (1 + 0.044715 g^2)
  v_mul_f32 v42, v43, v40
  v_exp_f32 v42, v42
  v_add_f32 v42, 1.0, v42
  v_rcp_f32 v42, v42
  v_mul_f32 v42, v42, v40               ; gelu(g)
  v_cvt_pk_bf16_f32 v42, v42, v42
  v_and_b32 v42, 0xffff0000, v42
  v_mul_f32 v42, v42, v41
  v_cvt_pk_bf16_f32 v42, v42, v42
  ds_write_b16 v33, v42 offset:{L_AV}
  s_branch L_b4
L_wrole:
  s_cmp_ge_u32 s3, 2
  s_cbranch_scc1 L_b4
  v_lshrrev_b32 v35, 2, v0
  v_mul_u32_u24 v35, 1152, v35
  s_lshl_b32 s54, s3, 2
  v_and_b32 v33, 3, v0
  v_add_u32 v33, s54, v33               ; granule 0..7
  v_lshl_add_u32 v34, v33, 4, v35
  s_mul_i32 s54, s36, {16*1152}
  s_add_u32 s54, s54, {WS_H2}
  s_lshr_b32 s55, s42, 2
  s_lshl_b32 s55, s55, 4
  s_add_u32 s55, s55, s54
  s_lshl_b32 s56, s42, 7
  s_add_u32 s54, s54, s56
  v_lshlrev_b32 v33, 3, v33
  v_bfe_u32 v36, v0, 4, 1
  v_lshl_add_u32 v33, v36, 2, v33
  v_lshrrev_b32 v36, 5, v0
  v_lshl_add_u32 v33, v36, 1, v33
  s_mov_b32 s53, {C_LOG2E}
L_pollh2:
  buffer_load_dwordx4 v[40:43], v34, s[28:31], s54 offen {ld}
  buffer_load_dwordx4 v[44:47], v35, s[28:31], s55 offen offset:1024 {ld}
  s_waitcnt vmcnt(0)
""")
    untag(40, 36); untag(44, 36, first=False)
    poll_end(36, 'L_pollh2')
    a(f"""
  v_max_f32_dpp v36, v44, v44 row_ror:4 row_mask:0xf bank_mask:0xf
  v_max_f32_dpp v36, v36, v36 row_ror:8 row_mask:0xf bank_mask:0xf
  v_mov_b32 v37, v36
  v_permlane32_swap_b32 v36, v37
  v_max_f32 v36, v36, v37
  v_mov_b32 v37, v36
  v_permlane16_swap_b32 v36, v37
  v_max_f32 v36, v36, v37
  v_mul_f32 v36, s53, v36
  v_fma_f32 v36, v44, s53, -v36
  v_exp_f32 v36, v36
  v_mul_f32 v45, v45, v36
  v_mul_f32 v40, v40, v36
  v_mul_f32 v41, v41, v36
  v_mul_f32 v42, v42, v36
  v_mul_f32 v43, v43, v36
  v_mov_b32 v37, v45
  v_permlane32_swap_b32 v45, v37
  v_add_f32 v45, v45, v37
  v_mov_b32 v37, v45
  v_permlane16_swap_b32 v45, v37
  v_add_f32 v45, v45, v37
""")
    rows4to1(40, 40)
    a(f"""
  v_add_f32_dpp v45, v45, v45 row_ror:4 row_mask:0xf bank_mask:0xf
  v_add_f32_dpp v40, v40, v40 row_ror:4 row_mask:0xf bank_mask:0xf
  v_add_f32_dpp v45, v45, v45 row_ror:8 row_mask:0xf bank_mask:0xf
  v_add_f32_dpp v40, v40, v40 row_ror:8 row_mask:0xf bank_mask:0xf
  v_rcp_f32 v45, v45
  v_mul_f32 v40, v40, v45
  v_cvt_pk_bf16_f32 v40, v40, v40
  ds_write_b16 v33, v40 offset:{L_AV}
L_b4:
  v_lshrrev_b32 v33, 3, v0
  v_lshlrev_b32 v33, 1, v33
  v_and_b32 v34, 7, v0
  v_lshlrev_b32 v34, 13, v34
  v_and_b32 v35, 16, v0
  v_add_u32 v34, v34, v35
  v_and_b32 v35, {BIG}, v2
  v_or_b32 v34, v34, v35
  s_xor_b32 s54, s2, 0x80
  s_lshl_b32 s54, s54, 5
  s_lshl_b32 s55, s3, 16
  s_add_u32 s54, s54, s55
  s_add_u32 s54, s54, {WS_H3}
  s_mov_b32 s55, 0x05040504
  s_waitcnt lgkmcnt(0)
  s_barrier                             ; B4
""")
    stamp(8)
    for t in range(5): a(f"  ds_read_u16 v{26+t}, v33 offset:{L_AV+16*t}")
    a("  s_waitcnt vmcnt(0) lgkmcnt(0)")
    for t in range(5): a(f"  v_perm_b32 v{26+t}, v{26+t}, v{26+t}, s55")
    for t in range(5):
        A = 16 + 4 * (t & 1)
        if t == 4:
            a("""
  s_cmp_eq_u32 s39, 1
  s_cbranch_scc1 L_f4
""")
        afrag(A, 26 + t)
        a(f"  v_mfma_f32_16x16x32_bf16 v[12:15], v[{A}:{A+3}], v[{56+4*t}:{59+4*t}], {'0' if t == 0 else 'v[12:15]'}")
    a("L_f4:")
    lane_combine(36)
    tag(12, 12)
    a(f"  buffer_store_dwordx4 v[12:15], v34, s[28:31], s54 offen {st}")
    stamp(9)
    a(f"""
  s_sub_u32 s54, s2, 128
  s_cmp_ge_u32 s54, 72
  s_cbranch_scc1 L_fin
  s_cmp_eq_u32 s3, 8
  s_cbranch_scc1 L_fin
  s_lshl_b32 s57, s54, 4
  v_lshlrev_b32 v38, 1, v0
  buffer_load_ushort v39, v38, s[4:7], s57 offen
  s_lshl_b32 s55, s54, 13
  s_lshl_b32 s56, s3, 10
  s_add_u32 s55, s55, s56
  s_add_u32 s55, s55, {WS_H3}
  v_and_b32 v33, 1, v0
  v_lshlrev_b32 v33, 7, v33
  v_bfe_u32 v36, v0, 4, 1
  v_lshl_add_u32 v33, v36, 6, v33
  v_lshrrev_b32 v36, 5, v0
  v_lshl_add_u32 v33, v36, 5, v33
  s_lshl_b32 s56, s3, 2
  v_add_u32 v33, s56, v33
  v_and_b32 v37, 7, v0
  v_lshlrev_b32 v37, 5, v37
L_pollh3:
  buffer_load_dwordx4 v[40:43], v1, s[28:31], s55 offen {ld}
  s_waitcnt vmcnt(0)
""")
    untag(40, 44)
    poll_end(44, 'L_pollh3')
    rows4to1(40, 40)
    a(f"""
  v_add_f32_dpp v40, v40, v40 quad_perm:[2,3,0,1] row_mask:0xf bank_mask:0xf
  v_add_f32_dpp v40, v40, v40 row_ror:4 row_mask:0xf bank_mask:0xf
  v_add_f32_dpp v40, v40, v40 row_ror:8 row_mask:0xf bank_mask:0xf
  ds_write_b32 v33, v40 offset:{L_RED}
  s_waitcnt lgkmcnt(0)
  s_barrier                             ; B5
  s_cmp_lg_u32 s3, 0
  s_cbranch_scc1 L_fin
  ds_read_b128 v[40:43], v37 offset:{L_RED}
  ds_read_b128 v[44:47], v37 offset:{L_RED+16}
  v_lshlrev_b32 v39, 16, v39
  v_cmp_gt_u32 vcc, 8, v0
  v_mov_b32 v36, {BIG}
  v_cndmask_b32 v38, v36, v38, vcc
  s_waitcnt lgkmcnt(0)
  v_add_f32 v40, v40, v41
  v_add_f32 v42, v42, v43
  v_add_f32 v44, v44, v45
  v_add_f32 v46, v46, v47
  v_add_f32 v40, v40, v42
  v_add_f32 v44, v44, v46
  v_cvt_pk_bf16_f32 v40, v40, v44
  v_lshlrev_b32 v41, 16, v40
  v_and_b32 v40, 0xffff0000, v40
  v_add_f32 v41, v41, v39
  v_cvt_pk_bf16_f32 v41, v41, v41
  v_and_b32 v41, 0xffff0000, v41
  v_add_f32 v41, v41, v40
  v_cvt_pk_bf16_f32 v41, v41, v41
  buffer_store_short v41, v38, s[32:35], s57 offen {outflag}
  s_cmp_lg_u32 s54, 0
  s_cbranch_scc1 L_fin
  v_mov_b32 v40, s47
  v_mov_b32 v42, 0
  buffer_store_dword v40, v42, s[28:31], 0 offen sc1
  s_branch L_fin
""")
    a("L_w8:")
    a(f"""
  v_and_b32 v33, 15, v0
  v_lshlrev_b32 v33, 4, v33
""")
    for w in range(9): a(f"  ds_read_b128 v[{88+4*w}:{91+4*w}], v33 offset:{L_QP+256*w}")
    a(f"""
  s_lshl_b32 s54, s36, 12
  s_add_u32 s54, s54, {WS_H1}
  s_and_b32 s55, s37, 3
  s_lshl_b32 s55, s55, 10
  s_lshr_b32 s56, s37, 2
  s_lshl_b32 s56, s56, 8
  s_add_u32 s55, s55, s56
  s_add_u32 s55, s55, s54
  v_cmp_gt_u32 vcc, 16, v0
  v_mov_b32 v34, {BIG}
  v_cndmask_b32 v34, v34, v33, vcc
  s_waitcnt lgkmcnt(0)
""")
    for w in range(1, 9):
        for r in range(4): a(f"  v_add_f32 v{88+r}, v{88+r}, v{88+4*w+r}")
    for r in range(4): a(f"  v_add_u32 v{88+r}, 0x80, v{88+r}")
    tag(88, 88)
    a(f"""
  buffer_store_dwordx4 v[88:91], v34, s[28:31], s55 offen {st}
""")
    stamp(3)
    a("L_pollh1:")
    for rb in range(4): a(f"  buffer_load_dwordx4 v[{92+4*rb}:{95+4*rb}], v1, s[28:31], s54 offen offset:{1024*rb} {ld}")
    a("  s_waitcnt vmcnt(0)")
    for rb in range(4): untag(92 + 4 * rb, 33, first=(rb == 0))
    poll_end(33, 'L_pollh1')
    for r in range(4):
        a(f"  v_add_f32 v{92+r}, v{92+r}, v{96+r}")
        a(f"  v_add_f32 v{100+r}, v{100+r}, v{104+r}")
    for r in range(4): a(f"  v_add_f32 v{92+r}, v{92+r}, v{100+r}")
    a(f"""
  v_cvt_pk_bf16_f32 v92, v92, v93
  v_cvt_pk_bf16_f32 v93, v94, v95
  v_lshlrev_b32 v33, 3, v0
  ds_write_b64 v33, v[92:93] offset:{L_QS}
  s_waitcnt lgkmcnt(0)
""")
    stamp(4)
    a("  s_barrier                             ; B2")
    vm.q = []
    for n in seq[16:pos_shared]: issue(n)
    a(f"""
  v_and_b32 v33, 32, v0
  v_lshlrev_b32 v33, 1, v33             ; head*64
  s_lshl_b32 s54, s36, 4
  s_add_u32 s54, s54, s37
  s_mul_i32 s54, s54, 1152
  s_add_u32 s54, s54, {WS_H2}
  v_and_b32 v34, 31, v0
  v_cmp_eq_u32 vcc, 0, v34
  v_lshrrev_b32 v34, 1, v0
  v_mov_b32 v35, {BIG}
  v_cndmask_b32 v34, v35, v34, vcc      ; lanes 0, 32 -> 0, 16
  s_mov_b32 s53, {C_LOG2E}
  s_barrier                             ; B3
""")
    stamp(5)
    for i in range(4): a(f"  ds_read_b128 v[{56+4*i}:{59+4*i}], v33 offset:{L_ML+16*i}")
    for w in range(8): a(f"  ds_read_b128 v[{88+4*w}:{91+4*w}], v1 offset:{L_OP+1024*w}")
    a(f"""
  s_waitcnt lgkmcnt(8)
  v_max3_f32 v44, v56, v58, v60
  v_max3_f32 v35, v62, v64, v66
  v_max3_f32 v44, v44, v68, v70
  v_max_f32 v44, v44, v35
  v_mul_f32 v35, s53, v44
""")
    for w in range(8): a(f"  v_fma_f32 v{56+2*w}, v{56+2*w}, s53, -v35")
    for w in range(8): a(f"  v_exp_f32 v{56+2*w}, v{56+2*w}")
    a("  v_mul_f32 v45, v56, v57")
    for w in range(1, 8): a(f"  v_fmac_f32 v45, v{56+2*w}, v{57+2*w}")
    a("""
  v_mov_b32 v46, 0
  v_mov_b32 v47, 0
  s_waitcnt lgkmcnt(0)
""")
    for r in range(4): a(f"  v_mul_f32 v{40+r}, v56, v{88+r}")
    for w in range(1, 8):
        for r in range(4): a(f"  v_fmac_f32 v{40+r}, v{56+2*w}, v{88+4*w+r}")
    tag(40, 40); tag(44, 44)
    a(f"""
  buffer_store_dwordx4 v[40:43], v1, s[28:31], s54 offen {st}
  buffer_store_dwordx4 v[44:47], v34, s[28:31], s54 offen offset:1024 {st}
""")
    stamp(6)
    a("""
  s_branch L_shared
L_fin:
""")
    if stamps:
        stamp(10)
        a("""
  s_waitcnt vmcnt(0)
""")
        stamp(11)
        a("""
  s_waitcnt lgkmcnt(0)
  v_mov_b32 v40, 0
""")
        for i in range(12): a(f"  v_writelane_b32 v40, s{60+2*i}, {i}")
        a(f"""
  v_writelane_b32 v40, s59, 12
  s_mul_i32 s54, s2, 9
  s_add_u32 s54, s54, s3
  s_lshl_b32 s54, s54, 6
  s_add_u32 s54, s54, {WS_STAMP}
  v_lshlrev_b32 v41, 2, v0
  v_cmp_gt_u32 vcc, 16, v0
  v_mov_b32 v42, {BIG}
  v_cndmask_b32 v41, v42, v41, vcc
  buffer_store_dword v40, v41, s[28:31], s54 offen
""")
    a("""
L_end:
  s_endpgm
""")
    text, added = hazard.pad(a.text())
    open(name, 'w').write(wrap(text, 256, 576, LDS, 144, sgpr=96))
    return added
if __name__ == '__main__':
    print('nops added', gen('k1.s'), gen('k1s.s', stamps=True))
```
